```python
import torch

def _softmax(x, axis=-1):
    return torch.softmax(x, dim=axis)
def _gelu(x):
    return torch.nn.functional.gelu(x, approximate="tanh")
def _silu(x):
    return torch.nn.functional.silu(x)
def _sigmoid(x):
    return torch.sigmoid(x)
def _layernorm(x, axis=-1, eps=1e-5):
    m = x.mean(dim=axis, keepdim=True)
    v = x.var(dim=axis, keepdim=True, unbiased=False)
    return (x - m) / torch.sqrt(v + eps)
def _scatter_add(tgt, idx, src, axis=0):
    return tgt.clone().index_add_(axis, idx, src)
def _segment_sum(src, seg, n):
    out = torch.zeros((n,) + src.shape[1:], dtype=src.dtype)
    return out.index_add_(0, seg, src)
def _pad(x, pw):
    flat = tuple(v for pair in reversed(pw) for v in pair)
    return torch.nn.functional.pad(x, flat)

kernel_name = 'recurrent_scan__gqa_block_cached__dense_activation_gelu__decode'

def setup_inputs():

    _w = (lambda a: (lambda t: t.to(torch.bfloat16) if t.is_floating_point() else t)(torch.as_tensor(a)))
    def _A_setup():
        B, Sq, D = 8, 1, 448
        Hq, Hkv, Sk, Dh = 16, 8, 8192, 256
        assert Hq % Hkv == 0, (Hq, Hkv)
        return {
            "x": _w((lambda *s: torch.randn(*s, dtype=torch.bfloat16) * 0.05)(B, Sq, D)),
            "k_cache": _w((lambda *s: torch.randn(*s, dtype=torch.bfloat16) * 3.2)(B, Hkv, Sk, Dh)),
            "v_cache": _w((lambda *s: torch.randn(*s, dtype=torch.bfloat16) * 3.2)(B, Hkv, Sk, Dh)),
            "wq": _w((lambda *s: torch.randn(*s, dtype=torch.bfloat16) * 3.2)(D, Hq * Dh) * (D ** -0.5)),
            "wo": _w((lambda *s: torch.randn(*s, dtype=torch.bfloat16) * 3.2)(Hq * Dh, D) * ((Hq * Dh) ** -0.5)),
        }
    _A_in = _A_setup()

    def _B_setup():
        B, S, D, F = 8, 1, 448, 1792
        return {
            "x": _w((lambda *s: torch.randn(*s, dtype=torch.bfloat16) * 0.05)(B, S, D)),
            "w1": _w((lambda *s: torch.randn(*s, dtype=torch.bfloat16) * 3.2)(D, F) * (D ** -0.5)),
            "b1": _w((lambda *s: torch.randn(*s, dtype=torch.bfloat16) * 3.2)(F) * 0.01),
            "w2": _w((lambda *s: torch.randn(*s, dtype=torch.bfloat16) * 0.8)(F, D) * (F ** -0.5)),
            "b2": _w((lambda *s: torch.randn(*s, dtype=torch.bfloat16) * 0.8)(D) * 0.01),
        }
    _B_in = _B_setup()

    return {
        "A_x": _A_in["x"],
        "A_k_cache": _A_in["k_cache"],
        "A_v_cache": _A_in["v_cache"],
        "A_wq": _A_in["wq"],
        "A_wo": _A_in["wo"],
        "B_x": _B_in["x"],
        "B_w1": _B_in["w1"],
        "B_b1": _B_in["b1"],
        "B_w2": _B_in["w2"],
        "B_b2": _B_in["b2"],
    }

def reference(A_x, A_k_cache, A_v_cache, A_wq, A_wo, B_x, B_w1, B_b1, B_w2, B_b2):
    def _A_ref(x, k_cache, v_cache, wq, wo):
        B, Sq, D = x.shape
        Hq, Dh = 16, 256
        Hkv = k_cache.shape[1]
        rep = Hq // Hkv
        q = (lambda x, *d: x.permute(*d))((x @ wq).reshape(B, Sq, Hq, Dh), 0, 2, 1, 3)
        k = (lambda x, n, axis: torch.repeat_interleave(x, n, dim=axis))(k_cache, rep, axis=1)
        v = (lambda x, n, axis: torch.repeat_interleave(x, n, dim=axis))(v_cache, rep, axis=1)
        scores = torch.einsum("bhqd,bhkd->bhqk", q, k) * (Dh ** -0.5)
        p = _softmax(scores, axis=-1)
        o = torch.einsum("bhqk,bhkd->bhqd", p, v)
        return (lambda x, *d: x.permute(*d))(o, 0, 2, 1, 3).reshape(B, Sq, Hq * Dh) @ wo

    def _B_ref(x, w1, b1, w2, b2):
        h = torch.einsum("bsd,df->bsf", x, w1) + b1
        h = _gelu(h)
        return torch.einsum("bsf,fd->bsd", h, w2) + b2

    x = A_x
    xn = _layernorm(x, axis=-1)
    s = _A_ref(xn, A_k_cache, A_v_cache, A_wq, A_wo)
    g = _silu(_B_ref(xn, B_w1, B_b1, B_w2, B_b2))
    return x + s * g
```

```python
import sys, math, struct
KN = "recurrent_scan__gqa_block_cached__dense_activation_gelu__decode"

def f2u(x):
    return struct.unpack("<I", struct.pack("<f", x))[0]

class Asm:
    def __init__(self):
        self.L = []
        self.q = []
    def __call__(self, s):
        for line in s.split("\n"):
            line = line.strip()
            if line:
                self.L.append(("" if line.endswith(":") else "    ") + line)
    def issue(self, tag):
        self.q.append(tag)
    def wait(self, tag):
        idx = max(i for i, t in enumerate(self.q) if t == tag)
        n = len(self.q) - 1 - idx
        assert n <= 63
        self(f"s_waitcnt vmcnt({n})")
        self.q = self.q[idx+1:]
    def text(self):
        return "\n".join(self.L) + "\n"

WS_PART = 0
WS_ML = 0x80000
WS_H = 0x90000
WS_SIZE = 0x100000
CSC = 0.0625 * math.log2(math.e)

def srd(A, d, lo, nrec):
    A(f"s_mov_b32 s{d}, s{lo}\ns_mov_b32 s{d+1}, s{lo+1}\ns_mov_b32 s{d+2}, {nrec}\ns_mov_b32 s{d+3}, 0x20000")

def allreduce_g(A, op, a, b):
    A(f"v_mov_b32 v{b}, v{a}\ns_nop 1\nv_permlane16_swap_b32 v{a}, v{b}\n{op} v{a}, v{a}, v{b}")
    A(f"v_mov_b32 v{b}, v{a}\ns_nop 1\nv_permlane32_swap_b32 v{a}, v{b}\n{op} v{a}, v{a}, v{b}")

def wave_sum(A, a, b):
    A(f"s_nop 1\nv_add_f32 v{a}, v{a}, v{a} quad_perm:[1,0,3,2]")
    A(f"s_nop 1\nv_add_f32 v{a}, v{a}, v{a} quad_perm:[2,3,0,1]")
    A(f"s_nop 1\nv_add_f32 v{a}, v{a}, v{a} row_half_mirror")
    A(f"s_nop 1\nv_add_f32 v{a}, v{a}, v{a} row_mirror")
    allreduce_g(A, "v_add_f32", a, b)

def bf16r(A, d, s):
    A(f"v_cvt_pk_bf16_f32 v{d}, v{s}, v{s}\nv_lshlrev_b32 v{d}, 16, v{d}")

def kernel_a(A, name):
    NT = " nt"
    sK, sV, sWQ, sX, sW1, sWS, sB1 = 8, 12, 16, 20, 24, 28, 32
    vDma, vKad, vVad = 4, 8, 12
    vM, vL, vAl = 20, 21, 22
    S, P, T, XN = 32, 40, 44, 52
    qB, Kf, Vf, acc = 64, 96, 128, 192
    RING0, RING = 128, 28
    QA, PT, HA = 96, 104, 112
    SCR = 0
    QPART, QBUF, XNL, HPART, OPART, MLS = SCR, SCR+8192, SCR+9216, SCR+13312, SCR+21504, SCR+29696
    A(f".p2align 8\n{name}:")
    A("s_cmp_ge_u32 s2, 256\ns_cbranch_scc1 LA_done")
    A("s_load_dwordx16 s[36:51], s[0:1], 0\ns_load_dwordx2 s[56:57], s[0:1], 96")
    A("v_lshrrev_b32 v2, 6, v0\nv_and_b32 v1, 63, v0\ns_nop 0\nv_readfirstlane_b32 s3, v2")
    A("s_and_b32 s58, s2, 7\ns_lshr_b32 s59, s2, 5\ns_lshr_b32 s60, s2, 3\ns_and_b32 s60, s60, 3")
    A("s_lshl_b32 s61, s59, 3\ns_add_u32 s61, s61, s58\ns_lshl_b32 s61, s61, 22\ns_lshl_b32 s63, s60, 20\ns_add_u32 s61, s61, s63")
    A("s_lshl_b32 s63, s3, 14\ns_add_u32 s61, s61, s63")
    A("s_lshl_b32 s62, s3, 15\ns_add_u32 s62, s62, 32768")
    A("v_lshrrev_b32 v2, 5, v1\nv_and_b32 v3, 31, v1\nv_lshlrev_b32 v23, 1, v2\nv_xor_b32 v3, v3, v23\nv_lshlrev_b32 v3, 4, v3\nv_lshl_add_u32 v4, v2, 9, v3")
    for m in range(1, 4):
        A(f"v_xor_b32 v{vDma+m}, {m*64}, v4")
    A("v_lshlrev_b32 v2, 4, v1")
    A("s_waitcnt lgkmcnt(0)")
    srd(A, sK, 38, "0x10000000"); srd(A, sV, 40, "0x10000000")
    srd(A, sWQ, 42, 448*8192); srd(A, sW1, 48, 448*3584); srd(A, sWS, 56, WS_SIZE); srd(A, sB1, 50, 3584)
    A(f"s_mul_i32 s63, s59, 896\ns_add_u32 s{sX}, s36, s63\ns_addc_u32 s{sX+1}, s37, 0\ns_mov_b32 s{sX+2}, 896\ns_mov_b32 s{sX+3}, 0x20000")
    A(f"buffer_load_dwordx4 v[56:59], v2, s[{sX}:{sX+3}], 0 offen"); A.issue("x")

    def dma(srdn, ldsoff, memoff, n):
        for g in range(n//4):
            A(f"s_add_u32 m0, s62, {ldsoff+g*4096}")
            A(f"s_add_u32 s63, s61, {memoff+g*4096}")
            for j in range(4):
                A(f"buffer_load_dwordx4 v{vDma+j}, s[{srdn}:{srdn+3}], s63 offen offset:{j*1024}{NT} lds")
                A.issue("dma")
    dma(sK, 0, 0, 8); dma(sK, 8192, 8192, 8); dma(sV, 16384, 0, 16)
    A("s_add_u32 s61, s61, 65536")
    A("s_mul_i32 s73, s3, 917504\ns_lshl_b32 s63, s58, 10\ns_add_u32 s73, s73, s63")
    def wq_load(r):
        slot = r % RING
        A(f"s_add_u32 s63, s73, {r*8192}")
        A(f"buffer_load_dwordx4 v[{RING0+slot*4}:{RING0+slot*4+3}], v2, s[{sWQ}:{sWQ+3}], s63 offen"); A.issue(f"wq{r}")
    for r in range(RING):
        wq_load(r)
    A("v_and_b32 v23, 15, v1\nv_lshrrev_b32 v24, 4, v1\nv_and_b32 v25, 7, v23\nv_lshlrev_b32 v25, 1, v25\nv_xor_b32 v25, v25, v24")
    A("v_lshlrev_b32 v25, 4, v25\nv_lshl_add_u32 v25, v23, 9, v25\nv_add_u32 v8, s62, v25")
    for m in range(1, 4):
        A(f"v_xor_b32 v{vKad+m}, {m*64}, v8")
    A("v_lshrrev_b32 v23, 2, v1")
    A("v_and_b32 v25, 7, v23\nv_lshlrev_b32 v25, 1, v25")
    A("v_bfe_u32 v26, v1, 1, 1\nv_or_b32 v25, v25, v26\nv_lshlrev_b32 v25, 4, v25")
    A("v_and_b32 v26, 1, v1\nv_lshl_add_u32 v25, v26, 3, v25\nv_lshl_add_u32 v25, v23, 9, v25")
    A("v_add_u32 v25, s62, v25\nv_add_u32 v12, 16384, v25")
    for m in range(1, 8):
        A(f"v_xor_b32 v{vVad+m}, {m*32}, v12")
    A(f"s_mov_b32 s67, 0x05040100\ns_mov_b32 s68, 0x07060302\ns_mul_i32 s72, s3, 14\ns_mov_b32 s74, {f2u(CSC):#x}")
    A.wait("x")
    for i in range(4):
        A(f"v_lshlrev_b32 v{32+2*i}, 16, v{56+i}\nv_and_b32 v{33+2*i}, 0xffff0000, v{56+i}")
    A("v_add_f32 v23, v32, v33\nv_add_f32 v24, v34, v35\nv_add_f32 v25, v36, v37\nv_add_f32 v26, v38, v39")
    A("v_add_f32 v23, v23, v24\nv_add_f32 v25, v25, v26\nv_add_f32 v23, v23, v25")
    wave_sum(A, 23, 24)
    A(f"v_mul_f32 v23, {f2u(1.0/448):#x}, v23")
    A("v_mov_b32 v25, 0")
    for i in range(8):
        A(f"v_sub_f32 v26, v{32+i}, v23\nv_fmac_f32 v25, v26, v26")
    A("v_cmp_gt_u32 vcc, 56, v1\ns_nop 1\nv_cndmask_b32 v25, 0, v25, vcc")
    wave_sum(A, 25, 24)
    A(f"v_mul_f32 v25, {f2u(1.0/448):#x}, v25")
    bf16r(A, 23, 23); bf16r(A, 25, 25)
    A(f"v_add_f32 v25, {f2u(1e-5):#x}, v25"); bf16r(A, 25, 25)
    A("v_sqrt_f32 v25, v25\ns_nop 0"); bf16r(A, 25, 25)
    A("v_rcp_f32 v26, v25")
    for i in range(8):
        A(f"v_sub_f32 v{32+i}, v{32+i}, v23"); bf16r(A, 32+i, 32+i)
        A(f"v_mul_f32 v27, v{32+i}, v26\nv_fma_f32 v28, -v27, v25, v{32+i}\nv_fma_f32 v{32+i}, v28, v26, v27")
    for i in range(4):
        A(f"v_cvt_pk_bf16_f32 v{XN+i}, v{32+2*i}, v{33+2*i}")
    A(f"s_lshl_b32 s63, s3, 10\nv_add_u32 v23, s63, v2\nds_write_b128 v23, v[{XN}:{XN+3}] offset:{XNL}")
    for i in range(8):
        A(f"v_mov_b32 v{QA+i}, 0\nv_mov_b32 v{HA+i}, 0")
    A("s_lshl_b32 s75, s58, 2\ns_add_u32 s75, s75, s60")
    A("v_lshrrev_b32 v29, 3, v1\nv_and_b32 v30, 7, v1\nv_mul_u32_u24 v31, 7168, v29\nv_lshl_add_u32 v31, v30, 4, v31")
    A("s_mul_i32 s78, s3, 401408\ns_lshl_b32 s63, s75, 7\ns_add_u32 s78, s78, s63")
    A("s_mul_i32 s63, s3, 1248\nv_lshlrev_b32 v29, 2, v29\nv_add_u32 v29, s63, v29")
    A(f"s_lshl_b32 s63, s75, 7\nv_lshlrev_b32 v60, 1, v1\nbuffer_load_ushort v61, v60, s[{sB1}:{sB1+3}], s63 offen"); A.issue("b1")
    hslots = []
    def h_load(i, slot0, slot1):
        A(f"s_add_u32 s63, s78, {16*i*3584}")
        A(f"buffer_load_dwordx4 v[{RING0+slot0*4}:{RING0+slot0*4+3}], v31, s[{sW1}:{sW1+3}], s63 offen"); A.issue(f"h{i}")
        A(f"buffer_load_dwordx4 v[{RING0+slot1*4}:{RING0+slot1*4+3}], v31, s[{sW1}:{sW1+3}], s63 offen offset:3584"); A.issue(f"h{i}")
        hslots.append((slot0, slot1))
    def pairdot(ra, rb, xs, accb):
        for c in range(4):
            A(f"v_perm_b32 v{PT+2*c}, v{rb+c}, v{ra+c}, s67\nv_perm_b32 v{PT+2*c+1}, v{rb+c}, v{ra+c}, s68")
        for c in range(8):
            A(f"v_dot2_f32_bf16 v{accb+c}, v{PT+c}, {xs}, v{accb+c}")
    for p in range(56):
        if p % 4 == 0:
            A(f"s_add_u32 s69, s72, {p//4}")
        xs = 70 + (p & 1)
        A(f"v_readlane_b32 s{xs}, v{XN+(p&3)}, s69")
        A.wait(f"wq{2*p+1}")
        s0, s1 = (2*p) % RING, (2*p+1) % RING
        pairdot(RING0+s0*4, RING0+s1*4, f"s{xs}", QA)
        if 2*p+RING < 112:
            wq_load(2*p+RING); wq_load(2*p+RING+1)
        elif len(hslots) < 7:
            h_load(len(hslots), s0, s1)
    A(f"s_lshl_b32 s63, s3, 11\nv_lshlrev_b32 v23, 5, v1\nv_add_u32 v23, s63, v23")
    A(f"ds_write_b128 v23, v[{QA}:{QA+3}] offset:{QPART}\nds_write_b128 v23, v[{QA+4}:{QA+7}] offset:{QPART+16}")
    for i in range(7):
        A(f"ds_read_b32 v{32+i}, v29 offset:{XNL+i*32}")
    A("s_waitcnt lgkmcnt(0)")
    for i in range(7):
        A.wait(f"h{i}")
        s0, s1 = hslots[i]
        pairdot(RING0+s0*4, RING0+s1*4, f"v{32+i}", HA)
    A(f"ds_write_b128 v23, v[{HA}:{HA+3}] offset:{HPART}\nds_write_b128 v23, v[{HA+4}:{HA+7}] offset:{HPART+16}")
    A("s_waitcnt lgkmcnt(0)\ns_barrier")
    A("v_lshlrev_b32 v23, 3, v0")
    for w in range(4):
        A(f"ds_read_b64 v[{32+2*w}:{33+2*w}], v23 offset:{QPART+w*2048}")
    A("s_waitcnt lgkmcnt(0)")
    A("v_add_f32 v32, v32, v34\nv_add_f32 v33, v33, v35\nv_add_f32 v36, v36, v38\nv_add_f32 v37, v37, v39\nv_add_f32 v32, v32, v36\nv_add_f32 v33, v33, v37")
    A(f"v_cvt_pk_bf16_f32 v32, v32, v33\nv_lshlrev_b32 v23, 2, v0\nds_write_b32 v23, v32 offset:{QBUF}")
    A("s_waitcnt lgkmcnt(0)\ns_barrier")
    for i in range(32):
        A(f"v_mov_b32 v{qB+i}, 0")
    A("v_and_b32 v23, 15, v1\nv_lshrrev_b32 v24, 4, v1\nv_lshlrev_b32 v24, 4, v24\nv_lshl_add_u32 v24, v23, 9, v24")
    A("v_cmp_gt_u32 vcc, 2, v23\ns_and_saveexec_b64 s[76:77], vcc")
    for ks in range(8):
        A(f"ds_read_b128 v[{qB+4*ks}:{qB+4*ks+3}], v24 offset:{QBUF+ks*64}")
    A("s_mov_b64 exec, s[76:77]")
    A("s_cmp_lg_u32 s3, 0\ns_cbranch_scc1 LA_noh\ns_cmp_ge_u32 s75, 28\ns_cbranch_scc1 LA_noh")
    A("v_lshlrev_b32 v23, 2, v1")
    for i in range(32):
        A(f"ds_read_b32 v{128+i}, v23 offset:{HPART+i*256}")
    A("s_waitcnt lgkmcnt(0)")
    for st in (16, 8, 4, 2, 1):
        for i in range(st):
            A(f"v_add_f32 v{128+i}, v{128+i}, v{128+i+st}")
    bf16r(A, 128, 128)
    A("v_lshlrev_b32 v61, 16, v61\nv_add_f32 v128, v128, v61"); bf16r(A, 128, 128)
    A(f"v_mul_f32 v129, v128, v128\nv_mul_f32 v129, v129, v128\nv_mov_b32 v130, {f2u(0.044715):#x}\nv_fma_f32 v129, v129, v130, v128")
    A(f"v_mul_f32 v129, {f2u(-2*0.7978845608028654*math.log2(math.e)):#x}, v129\nv_exp_f32 v129, v129\ns_nop 0\nv_add_f32 v129, 1.0, v129\nv_rcp_f32 v129, v129\ns_nop 0\nv_mul_f32 v128, v128, v129")
    A("v_cvt_pk_bf16_f32 v128, v128, v128")
    A(f"s_mul_i32 s63, s59, 3584\ns_lshl_b32 s79, s75, 7\ns_add_u32 s63, s63, s79\ns_add_u32 s63, s63, {WS_H}")
    A(f"buffer_store_short v128, v60, s[{sWS}:{sWS+3}], s63 offen")
    A("LA_noh:")
    for i in range(64):
        A(f"v_mov_b32 v{acc+i}, 0")
    A(f"v_mov_b32 v{vM}, {f2u(-3.0e38):#x}\nv_mov_b32 v{vL}, 0")
    A("s_waitcnt vmcnt(0) lgkmcnt(0)")
    A.q = []
    def tile(pref):
        for half in range(2):
            A(f"s_waitcnt vmcnt({24 if pref else 24-8*half})")
            for ks in range(8):
                A(f"ds_read_b128 v[{Kf+4*ks}:{Kf+4*ks+3}], v{vKad+(ks&3)} offset:{half*8192+(ks>>2)*256}")
            A("s_waitcnt lgkmcnt(0)")
            if pref:
                dma(sK, half*8192, half*8192, 8)
            for ks in range(8):
                c = "0" if ks == 0 else f"v[{S+4*half}:{S+4*half+3}]"
                A(f"v_mfma_f32_16x16x32_bf16 v[{S+4*half}:{S+4*half+3}], v[{Kf+4*ks}:{Kf+4*ks+3}], v[{qB+4*ks}:{qB+4*ks+3}], {c}")
        A("s_nop 7")
        for i in range(4):
            A(f"v_cvt_pk_bf16_f32 v{P+i}, v{S+2*i}, v{S+2*i+1}")
        for i in range(4):
            A(f"v_lshlrev_b32 v{T+2*i}, 16, v{P+i}\nv_and_b32 v{T+2*i+1}, 0xffff0000, v{P+i}")
        A(f"v_max3_f32 v23, v{T}, v{T+1}, v{T+2}\nv_max3_f32 v23, v23, v{T+3}, v{T+4}\nv_max3_f32 v23, v23, v{T+5}, v{T+6}\nv_max3_f32 v23, v23, v{T+7}, v{vM}")
        allreduce_g(A, "v_max_f32", 23, 24)
        A(f"v_sub_f32 v24, v{vM}, v23\nv_mul_f32 v24, s74, v24\nv_exp_f32 v{vAl}, v24\nv_mov_b32 v{vM}, v23")
        for i in range(8):
            A(f"v_sub_f32 v{T+i}, v{T+i}, v23\nv_mul_f32 v{T+i}, s74, v{T+i}")
        for i in range(8):
            A(f"v_exp_f32 v{T+i}, v{T+i}")
        A(f"v_readlane_b32 s65, v{vAl}, 0\nv_readlane_b32 s66, v{vAl}, 1")
        A(f"v_mul_f32 v{vL}, v{vL}, v{vAl}")
        for i in range(4):
            A(f"v_cvt_pk_bf16_f32 v{P+i}, v{T+2*i}, v{T+2*i+1}")
        A(f"v_add_f32 v24, v{T}, v{T+1}\nv_add_f32 v25, v{T+2}, v{T+3}\nv_add_f32 v26, v{T+4}, v{T+5}\nv_add_f32 v27, v{T+6}, v{T+7}")
        A(f"v_add_f32 v24, v24, v25\nv_add_f32 v26, v26, v27\nv_add_f32 v24, v24, v26\nv_add_f32 v{vL}, v{vL}, v24")
        for db in range(16):
            A(f"v_mul_f32 v{acc+4*db}, s65, v{acc+4*db}\nv_mul_f32 v{acc+4*db+1}, s66, v{acc+4*db+1}")
        A(f"s_waitcnt vmcnt({16 if pref else 0})")
        for db in range(16):
            for t in range(2):
                A(f"ds_read_b64_tr_b16 v[{Vf+4*db+2*t}:{Vf+4*db+2*t+1}], v{vVad+(db&7)} offset:{t*8192+(db>>3)*256}")
        A("s_waitcnt lgkmcnt(0)")
        if pref:
            dma(sV, 16384, 0, 16)
            A("s_add_u32 s61, s61, 65536")
        for db in range(16):
            A(f"v_mfma_f32_16x16x32_bf16 v[{acc+4*db}:{acc+4*db+3}], v[{P}:{P+3}], v[{Vf+4*db}:{Vf+4*db+3}], v[{acc+4*db}:{acc+4*db+3}]")
    A("s_mov_b32 s64, 15")
    A("LA_loop:")
    tile(True)
    A("s_sub_u32 s64, s64, 1\ns_cmp_lg_u32 s64, 0\ns_cbranch_scc1 LA_loop")
    tile(False)
    allreduce_g(A, "v_add_f32", vL, 24)
    A("s_nop 7")
    A(f"s_lshl_b32 s63, s3, 11\nv_lshlrev_b32 v23, 2, v1\nv_add_u32 v23, s63, v23")
    A("v_cmp_gt_u32 vcc, 16, v1\ns_and_saveexec_b64 s[76:77], vcc")
    for db in range(16):
        for h in range(2):
            A(f"ds_write_b32 v23, v{acc+4*db+h} offset:{OPART+h*1024+db*64}")
    A("s_mov_b64 exec, s[76:77]")
    A(f"s_lshl_b32 s63, s3, 4\nv_lshlrev_b32 v23, 3, v1\nv_add_u32 v23, s63, v23")
    A("v_cmp_gt_u32 vcc, 2, v1\ns_and_saveexec_b64 s[76:77], vcc")
    A(f"ds_write_b64 v23, v[{vM}:{vM+1}] offset:{MLS}")
    A("s_mov_b64 exec, s[76:77]")
    A("s_waitcnt lgkmcnt(0)\ns_barrier")
    A("v_lshrrev_b32 v23, 7, v0\nv_and_b32 v24, 127, v0\nv_lshlrev_b32 v25, 3, v23\nv_lshlrev_b32 v26, 3, v0")
    for w in range(4):
        A(f"ds_read_b64 v[{32+2*w}:{33+2*w}], v25 offset:{MLS+w*16}")
        A(f"ds_read_b64 v[{40+2*w}:{41+2*w}], v26 offset:{OPART+w*2048}")
    A("s_waitcnt lgkmcnt(0)")
    A("v_max3_f32 v27, v32, v34, v36\nv_max_f32 v27, v27, v38")
    for w in range(4):
        A(f"v_sub_f32 v{32+2*w}, v{32+2*w}, v27\nv_mul_f32 v{32+2*w}, s74, v{32+2*w}")
    for w in range(4):
        A(f"v_exp_f32 v{32+2*w}, v{32+2*w}")
    A("s_nop 0\nv_mul_f32 v28, v32, v33\nv_mul_f32 v48, v32, v40\nv_mul_f32 v49, v32, v41")
    for w in range(1, 4):
        A(f"v_fmac_f32 v28, v{32+2*w}, v{33+2*w}\nv_fmac_f32 v48, v{32+2*w}, v{40+2*w}\nv_fmac_f32 v49, v{32+2*w}, v{41+2*w}")
    A("s_lshl_b32 s63, s59, 4\ns_lshl_b32 s79, s58, 1\ns_add_u32 s63, s63, s79\ns_lshl_b32 s63, s63, 2\ns_add_u32 s63, s63, s60")
    A("v_lshlrev_b32 v25, 12, v23\nv_lshl_add_u32 v25, v24, 3, v25\ns_lshl_b32 s79, s63, 10")
    A(f"buffer_store_dwordx2 v[48:49], v25, s[{sWS}:{sWS+3}], s79 offen")
    A(f"v_lshlrev_b32 v25, 5, v23\ns_lshl_b32 s79, s63, 3\ns_add_u32 s79, s79, {WS_ML}")
    A("v_cmp_eq_u32 vcc, 0, v24\ns_and_saveexec_b64 s[76:77], vcc")
    A(f"v_mov_b32 v50, v27\nv_mov_b32 v51, v28\nbuffer_store_dwordx2 v[50:51], v25, s[{sWS}:{sWS+3}], s79 offen")
    A("LA_done:\ns_endpgm")
    return 163840

def kernel_b(A, name):
    sWO, sW2, sWS, sX, sB2, sO = 8, 12, 16, 20, 24, 28
    WO, W2, PO, ML, HV, aS, aG, PT, OP = 64, 128, 160, 224, 232, 32, 40, 48, 56
    A(f".p2align 8\n{name}:")
    A("s_cmp_ge_u32 s2, 256\ns_cbranch_scc1 LB_done")
    A("s_and_b32 s58, s2, 7\ns_cmp_eq_u32 s58, 7\ns_cbranch_scc1 LB_done")
    A("s_load_dwordx2 s[36:37], s[0:1], 0\ns_load_dwordx2 s[38:39], s[0:1], 32\ns_load_dwordx4 s[40:43], s[0:1], 64\ns_load_dwordx2 s[44:45], s[0:1], 80\ns_load_dwordx2 s[46:47], s[0:1], 96")
    A("v_lshrrev_b32 v2, 6, v0\nv_and_b32 v1, 63, v0\ns_nop 0\nv_readfirstlane_b32 s3, v2")
    A("s_lshr_b32 s59, s2, 5\ns_lshr_b32 s60, s2, 3\ns_and_b32 s60, s60, 3\ns_lshl_b32 s61, s58, 2\ns_add_u32 s61, s61, s60")
    A("v_lshrrev_b32 v2, 1, v1\nv_and_b32 v3, 1, v1")
    A("v_lshrrev_b32 v4, 4, v2\nv_and_b32 v5, 15, v2\nv_lshlrev_b32 v5, 6, v5\nv_lshl_add_u32 v5, v4, 12, v5")
    A("v_lshlrev_b32 v6, 5, v4")
    A("s_lshl_b32 s62, s59, 4\ns_lshl_b32 s63, s3, 1\ns_add_u32 s62, s62, s63\ns_lshl_b32 s62, s62, 2")
    A("v_mul_u32_u24 v7, 14336, v2\nv_lshl_add_u32 v7, v3, 4, v7")
    A("v_mul_u32_u24 v8, 7168, v2\nv_lshl_add_u32 v8, v3, 4, v8\nv_lshlrev_b32 v9, 4, v2\nv_mov_b32 v10, 0x40000000")
    A("v_cmp_gt_u32 vcc, 28, v2\ns_nop 1\nv_cndmask_b32 v8, v10, v8, vcc\nv_cndmask_b32 v9, v10, v9, vcc")
    A("s_waitcnt lgkmcnt(0)")
    srd(A, sWO, 38, 4096*896); srd(A, sW2, 40, 1792*896); srd(A, sWS, 46, WS_SIZE); srd(A, sX, 36, 8*896); srd(A, sB2, 42, 896); srd(A, sO, 44, 8*896)
    A(f"s_lshl_b32 s63, s62, 3\ns_add_u32 s63, s63, {WS_ML}")
    A(f"buffer_load_dwordx4 v[{ML}:{ML+3}], v6, s[{sWS}:{sWS+3}], s63 offen"); A.issue("p")
    A(f"buffer_load_dwordx4 v[{ML+4}:{ML+7}], v6, s[{sWS}:{sWS+3}], s63 offen offset:16"); A.issue("p")
    A("s_lshl_b32 s63, s62, 10")
    for c in range(4):
        for j in range(4):
            A(f"buffer_load_dwordx4 v[{PO+c*16+j*4}:{PO+c*16+j*4+3}], v5, s[{sWS}:{sWS+3}], s63 offen offset:{c*1024+j*16}"); A.issue("p")
    A(f"s_mul_i32 s63, s59, 3584\ns_mul_i32 s64, s3, 448\ns_add_u32 s63, s63, s64\ns_add_u32 s63, s63, {WS_H}")
    A(f"buffer_load_dwordx4 v[{HV}:{HV+3}], v9, s[{sWS}:{sWS+3}], s63 offen"); A.issue("hv")
    A("s_mul_i32 s63, s3, 458752\ns_lshl_b32 s64, s61, 5\ns_add_u32 s63, s63, s64")
    for i in range(16):
        if i and i % 4 == 0:
            A("s_add_u32 s63, s63, 3584")
        A(f"buffer_load_dwordx4 v[{WO+4*i}:{WO+4*i+3}], v7, s[{sWO}:{sWO+3}], s63 offen offset:{(i%4)*896}"); A.issue(f"wo{i}")
    A("s_mul_i32 s63, s3, 200704\ns_add_u32 s63, s63, s64")
    for i in range(8):
        if i and i % 4 == 0:
            A("s_add_u32 s63, s63, 3584")
        A(f"buffer_load_dwordx4 v[{W2+4*i}:{W2+4*i+3}], v8, s[{sW2}:{sW2+3}], s63 offen offset:{(i%4)*896}"); A.issue(f"w2{i}")
    A(f"v_and_b32 v11, 15, v1\nv_lshlrev_b32 v11, 1, v11\ns_mul_i32 s65, s59, 896\ns_add_u32 s65, s65, s64")
    A(f"buffer_load_ushort v12, v11, s[{sX}:{sX+3}], s65 offen"); A.issue("xb")
    A(f"buffer_load_ushort v13, v11, s[{sB2}:{sB2+3}], s64 offen"); A.issue("xb")
    A(f"s_mov_b32 s67, 0x05040100\ns_mov_b32 s68, 0x07060302\ns_mov_b32 s74, {f2u(CSC):#x}")
    for i in range(16):
        A(f"v_mov_b32 v{aS+i}, 0")
    A.wait("p")
    A(f"v_max3_f32 v14, v{ML}, v{ML+2}, v{ML+4}\nv_max_f32 v14, v14, v{ML+6}")
    for c in range(4):
        A(f"v_sub_f32 v{ML+2*c}, v{ML+2*c}, v14\nv_mul_f32 v{ML+2*c}, s74, v{ML+2*c}")
    for c in range(4):
        A(f"v_exp_f32 v{ML+2*c}, v{ML+2*c}")
    A(f"s_nop 0\nv_mul_f32 v15, v{ML}, v{ML+1}")
    for c in range(1, 4):
        A(f"v_fmac_f32 v15, v{ML+2*c}, v{ML+2*c+1}")
    A("v_rcp_f32 v15, v15\ns_nop 0")
    for c in range(4):
        A(f"v_mul_f32 v{ML+2*c}, v{ML+2*c}, v15")
    for i in range(16):
        A(f"v_mul_f32 v{PO+i}, v{PO+i}, v{ML}")
        for c in range(1, 4):
            A(f"v_fmac_f32 v{PO+i}, v{PO+c*16+i}, v{ML+2*c}")
    for i in range(8):
        A(f"v_cvt_pk_bf16_f32 v{OP+i}, v{PO+2*i}, v{PO+2*i+1}")
    def pairdot(ra, rb, xs, accb):
        for c in range(4):
            A(f"v_perm_b32 v{PT+2*c}, v{rb+c}, v{ra+c}, s67\nv_perm_b32 v{PT+2*c+1}, v{rb+c}, v{ra+c}, s68")
        for c in range(8):
            A(f"v_dot2_f32_bf16 v{accb+c}, v{PT+c}, {xs}, v{accb+c}")
    for i in range(8):
        A.wait(f"wo{2*i+1}")
        pairdot(WO+8*i, WO+8*i+4, f"v{OP+i}", aS)
    for i in range(4):
        A.wait(f"w2{2*i+1}")
        pairdot(W2+8*i, W2+8*i+4, f"v{HV+i}", aG)
    for r in (2, 4, 8):
        A("s_nop 1")
        for i in range(16):
            A(f"v_add_f32 v{aS+i}, v{aS+i}, v{aS+i} row_ror:{r}")
    A("v_lshrrev_b32 v14, 4, v1\nv_lshl_add_u32 v14, v14, 1, v3\nv_lshlrev_b32 v14, 6, v14\ns_lshl_b32 s63, s3, 9\nv_add_u32 v14, s63, v14")
    A("v_and_b32 v15, 14, v1\nv_cmp_eq_u32 vcc, 0, v15\ns_and_saveexec_b64 s[76:77], vcc")
    for j in range(4):
        A(f"ds_write_b128 v14, v[{aS+4*j}:{aS+4*j+3}] offset:{16*j}")
    A("s_mov_b64 exec, s[76:77]")
    A("s_waitcnt lgkmcnt(0)\ns_barrier")
    A("s_cmp_lg_u32 s3, 0\ns_cbranch_scc1 LB_done")
    A("v_bfe_u32 v14, v1, 3, 1\nv_and_b32 v15, 7, v1\nv_lshlrev_b32 v15, 2, v15\nv_lshl_add_u32 v15, v14, 6, v15\nv_lshrrev_b32 v14, 4, v1\nv_lshl_add_u32 v15, v14, 10, v15")
    for k in range(8):
        A(f"ds_read_b32 v{64+k}, v15 offset:{k*128}\nds_read_b32 v{72+k}, v15 offset:{k*128+32}")
    A("s_waitcnt lgkmcnt(0)")
    for st in (4, 2, 1):
        for i in range(st):
            A(f"v_add_f32 v{64+i}, v{64+i}, v{64+i+st}\nv_add_f32 v{72+i}, v{72+i}, v{72+i+st}")
    allreduce_g(A, "v_add_f32", 64, 16)
    allreduce_g(A, "v_add_f32", 72, 16)
    A("s_waitcnt vmcnt(0)")
    bf16r(A, 64, 64); bf16r(A, 72, 72)
    A("v_lshlrev_b32 v13, 16, v13\nv_lshlrev_b32 v12, 16, v12\nv_add_f32 v72, v72, v13"); bf16r(A, 72, 72)
    A(f"v_mul_f32 v16, {f2u(-math.log2(math.e)):#x}, v72\nv_exp_f32 v16, v16\ns_nop 0\nv_add_f32 v16, 1.0, v16\nv_rcp_f32 v16, v16\ns_nop 0\nv_mul_f32 v72, v72, v16"); bf16r(A, 72, 72)
    A("v_mul_f32 v64, v64, v72"); bf16r(A, 64, 64)
    A("v_add_f32 v64, v64, v12\nv_cvt_pk_bf16_f32 v64, v64, v64")
    A("v_cmp_gt_u32 vcc, 16, v1\ns_and_saveexec_b64 s[76:77], vcc")
    A(f"buffer_store_short v64, v11, s[{sO}:{sO+3}], s65 offen")
    A("LB_done:\ns_endpgm")
    return 4096

def desc(name, nv, ns=96):
    return f""".amdhsa_kernel {name}
  .amdhsa_next_free_vgpr {nv}
  .amdhsa_next_free_sgpr {ns}
  .amdhsa_accum_offset {(nv+3)//4*4}
  .amdhsa_group_segment_fixed_size 0
  .amdhsa_kernarg_size 104
  .amdhsa_user_sgpr_count 2
  .amdhsa_user_sgpr_kernarg_segment_ptr 1
  .amdhsa_system_sgpr_workgroup_id_x 1
.end_amdhsa_kernel
"""

def main(out):
    hdr = open("cdna_kernels/" + KN + ".s.ref").read().split("; Override launch")[0]
    A = Asm()
    ka, kb = KN + "_kernel", "fin_kernel"
    ldsa = kernel_a(A, ka)
    A.q = []
    ldsb = kernel_b(A, kb)
    s = hdr
    s += f"; @launch kernel={ka} grid=(256,1,1) block=(256,1,1) lds={ldsa}\n"
    s += f"; @launch kernel={kb} grid=(256,1,1) block=(512,1,1) lds={ldsb}\n"
    s += '.amdgcn_target "amdgcn-amd-amdhsa--gfx950"\n.text\n'
    s += f".globl {ka}\n.type {ka},@function\n.globl {kb}\n.type {kb},@function\n"
    s += A.text()
    s += '.section .rodata,"a"\n.p2align 6\n' + desc(ka, 256) + ".p2align 6\n" + desc(kb, 240)
    open(out, "w").write(s)

if __name__ == "__main__":
    main(sys.argv[1] if len(sys.argv) > 1 else "cdna_kernels/" + KN + ".s")
```
